```python
import torch

def _softmax(x, axis=-1):
    return torch.softmax(x, dim=axis)
def _gelu(x):
    return torch.nn.functional.gelu(x, approximate="tanh")
def _silu(x):
    return torch.nn.functional.silu(x)
def _sigmoid(x):
    return torch.sigmoid(x)
def _layernorm(x, axis=-1, eps=1e-5):
    m = x.mean(dim=axis, keepdim=True)
    v = x.var(dim=axis, keepdim=True, unbiased=False)
    return (x - m) / torch.sqrt(v + eps)
def _scatter_add(tgt, idx, src, axis=0):
    return tgt.clone().index_add_(axis, idx, src)
def _segment_sum(src, seg, n):
    out = torch.zeros((n,) + src.shape[1:], dtype=src.dtype)
    return out.index_add_(0, seg, src)
def _pad(x, pw):
    flat = tuple(v for pair in reversed(pw) for v in pair)
    return torch.nn.functional.pad(x, flat)

kernel_name = 'standalone__cross_network_dcn__recsys'

def setup_inputs():

    _w = (lambda a: (lambda t: t.to(torch.bfloat16) if t.is_floating_point() else t)(torch.as_tensor(a)))
    B, F, D, L = 4096, 100, 64, 3
    Din = min(F * D, 1024)
    return {
        "x0": _w((lambda *s: torch.randn(*s, dtype=torch.bfloat16) * 0.05)(B, Din)),
        "ws": _w((lambda *s: torch.randn(*s, dtype=torch.bfloat16) * 0.8)(L, Din, Din) * (Din ** -0.5)),
        "bs": _w((lambda *s: torch.randn(*s, dtype=torch.bfloat16) * 3.2)(L, Din) * 0.01),
    }

def reference(x0, ws, bs):
    x = x0
    L = ws.shape[0]
    for l in range(L):
        proj = torch.einsum('bd,de->be', x, ws[l]) + bs[l]
        x = x0 * proj + x
    return x
```

```python
class Asm:
    def __init__(self):
        self.lines = []
    def __call__(self, s=""):
        for l in s.split("\n"):
            self.lines.append(l)
    def label(self, name): self.lines.append(name + ":")
    def text(self): return "\n".join(self.lines) + "\n"

def header(launch_lines, comments=()):
    s = ""
    for c in comments: s += "; " + c + "\n"
    for l in launch_lines: s += "; @launch " + l + "\n"
    s += '.amdgcn_target "amdgcn-amd-amdhsa--gfx950"\n.text\n'
    return s

def kernel_begin(name):
    return f".globl {name}\n.p2align 8\n.type {name},@function\n{name}:\n"

def kernel_desc(name, vgpr, sgpr, accum_offset, wg_y=False):
    s = '.section .rodata,"a"\n.p2align 6\n'
    s += f".amdhsa_kernel {name}\n"
    s += f"  .amdhsa_next_free_vgpr {vgpr}\n  .amdhsa_next_free_sgpr {sgpr}\n  .amdhsa_accum_offset {accum_offset}\n"
    s += "  .amdhsa_group_segment_fixed_size 0\n  .amdhsa_kernarg_size 48\n  .amdhsa_user_sgpr_count 2\n  .amdhsa_user_sgpr_kernarg_segment_ptr 1\n  .amdhsa_system_sgpr_workgroup_id_x 1\n"
    if wg_y: s += "  .amdhsa_system_sgpr_workgroup_id_y 1\n"
    s += ".end_amdhsa_kernel\n.text\n"
    return s
```

```python
import sys
from asmlib import Asm, kernel_desc

DEFAULTS = dict(dsc1=1, stamp=0, flagpos=1, sc1=1, pollsleep=1, pf=1, name="standalone__cross_network_dcn__recsys_kernel")

def gen(**kw):
    o = dict(DEFAULTS); o.update(kw)
    name = o["name"]
    A = Asm()
    STAMP = o["stamp"]
    SC = " sc1" if o["sc1"] else ""
    DSC = " sc1" if o["dsc1"] else ""
    SLOT = 32768; NSLOT = 5; RING = SLOT*NSLOT
    XOFF = 16384
    WS_X = 0x800000
    WS_FLAGS = 0x1000000
    WS_STAMP = 0x2000000
    vXA = 4
    vWA = 6
    vLW = 10
    vST = 11
    vBO = 12
    vT = 13
    BIAS = 16
    WF = 32
    XF = 64
    XL = 96
    X0F = 128
    ACC = 192

    hdr  = "; Fused 3-layer DCN cross network: x_{l+1} = x0*(x_l W_l + b_l) + x_l, bf16, B=4096, D=1024.\n"
    hdr += "; One persistent launch: 256 workgroups (128x128 tile each), 4 MFMA waves + 2 W-loader + 2 x-loader waves.\n"
    hdr += "; @launch grid=(256,1,1) block=(512,1,1) lds=163840\n"
    hdr += '.amdgcn_target "amdgcn-amd-amdhsa--gfx950"\n.text\n'
    hdr += f".globl {name}\n.p2align 8\n.type {name},@function\n{name}:\n"
    A(hdr)
    stamp_idx = [0]
    def stamp(tag):
        if not STAMP: return
        i = stamp_idx[0]; stamp_idx[0] += 1
        A(f"  s_memrealtime s[62:63]\n  s_waitcnt lgkmcnt(0)\n  s_mov_b32 s{64+i}, s62")
    A("""
  s_cmp_ge_u32 s2, 256
  s_cbranch_scc1 L_end
  s_load_dwordx8 s[4:11], s[0:1], 0
  s_load_dwordx4 s[12:15], s[0:1], 32
  v_lshrrev_b32 v1, 6, v0
  v_and_b32 v0, 63, v0
  v_readfirstlane_b32 s3, v1
  s_and_b32 s16, s2, 7
  s_lshr_b32 s17, s2, 3
  s_and_b32 s18, s17, 7
  s_lshr_b32 s17, s17, 3
  s_lshl_b32 s16, s16, 2
  s_add_u32 s16, s16, s17
  s_cmp_ge_u32 s3, 6
  s_cbranch_scc1 L_xload
  s_cmp_ge_u32 s3, 4
  s_cbranch_scc1 L_wload
""")
    if STAMP: A("  s_memrealtime s[60:61]")
    if o["pf"]:
        A(f"""  s_getpc_b64 s[46:47]
L_pc:
  s_sub_u32 s46, s46, L_pc-{name}
  s_subb_u32 s47, s47, 0
  s_lshl_b32 s45, s3, 11
  v_lshl_add_u32 v13, v0, 5, s45
  global_load_dword v255, v13, s[46:47]""")
    A("""
  s_and_b32 s27, s3, 1              ; wn
  s_lshr_b32 s28, s3, 1             ; wm
  v_lshrrev_b32 v1, 4, v0           ; q
  v_bfe_u32 v2, v0, 2, 2            ; r
  v_and_b32 v3, 3, v0               ; c
  v_lshlrev_b32 v13, 2, v1
  v_add_u32 v13, v13, v2            ; 4q+r
  v_and_b32 v14, 7, v13
  v_lshlrev_b32 v13, 8, v13
  v_lshl_add_u32 v13, v3, 3, v13    ; (4q+r)*256 + 8c
  s_lshl_b32 s29, s27, 2            ; 4*wn
  v_xor_b32 v14, s29, v14           ; (4wn) ^ (k&7)
""")
    for t in range(4):
        A(f"  v_xor_b32 v15, {t}, v14\n  v_lshl_add_u32 v{vWA+t}, v15, 5, v13")
    A(f"""
  v_and_b32 v13, 15, v0             ; m
  v_lshrrev_b32 v14, 1, v13         ; f = m>>1
  v_xor_b32 v15, v1, v14            ; q ^ f
  v_lshlrev_b32 v15, 4, v15
  v_lshl_add_u32 v15, v13, 7, v15   ; m*128 + ..
  s_lshl_b32 s29, s28, 13           ; wm*8192
  s_add_u32 s29, s29, {XOFF}
  v_add_u32 v{vXA}, s29, v15
  v_xor_b32 v{vXA+1}, 64, v{vXA}
  v_lshrrev_b32 v15, 1, v1          ; q>>1
  v_xor_b32 v15, v15, v14           ; (q>>1) ^ f
  v_lshlrev_b32 v15, 4, v15
  v_lshl_add_u32 v15, v13, 7, v15
  v_and_b32 v14, 1, v1
  v_lshl_add_u32 v15, v14, 3, v15   ; + (q&1)*8
  s_lshl_b32 s30, s27, 15           ; wn*SLOT
  s_add_u32 s30, s30, s29
  v_add_u32 v{vLW}, s30, v15
  s_lshl_b32 s30, s18, 1
  s_add_u32 s30, s30, s27
  s_lshl_b32 s30, s30, 14
  s_lshl_b32 s31, s28, 13
  s_add_u32 s30, s30, s31
  s_lshl_b32 s31, s16, 18
  s_add_u32 s30, s30, s31
  v_lshl_add_u32 v{vST}, v0, 4, s30
  s_lshl_b32 s30, s18, 8
  s_lshl_b32 s31, s27, 7
  s_add_u32 s30, s30, s31
  v_lshl_add_u32 v{vBO}, v1, 3, s30
  s_waitcnt lgkmcnt(0)
""")
    for t in range(4): A(f"  global_load_dwordx2 v[{BIAS+4*t+2}:{BIAS+4*t+3}], v{vBO}, s[8:9] offset:{t*32}")
    A(f"""
  s_mov_b32 s20, s14
  s_mov_b32 s21, s15
  s_mov_b32 s22, {2*WS_X}
  s_mov_b32 s23, 0x20000
  s_mov_b32 s33, 0xffff0000
  s_mov_b32 s34, 0                  ; layer
  s_mov_b32 s35, 0
  s_mov_b32 s37, {SLOT}
  s_mov_b32 s38, {RING}
  s_mov_b32 s39, {(-RING + SLOT) & 0xffffffff}
  s_lshl_b32 s40, s16, 8
  s_lshl_b32 s41, s18, 4
  s_add_u32 s40, s40, s41
  s_add_u32 s40, s40, {WS_FLAGS}
  s_cmp_lg_u32 s3, 0
  s_cbranch_scc1 L_nohs
  v_lshrrev_b32 v13, 2, v0
  v_and_b32 v14, 3, v0
  v_lshlrev_b32 v13, 7, v13
  v_lshl_add_u32 v13, v14, 2, v13
  v_add_u32 v13, s40, v13
  v_mov_b32 v14, 0
  s_mov_b64 exec, 0xff
  global_store_dword v13, v14, s[14:15] sc1
  s_lshl_b32 s41, s16, 3
  v_mov_b32 v13, s41
  v_mov_b32 v14, 1
  s_mov_b64 exec, 1
  s_waitcnt vmcnt(0)
  global_atomic_add v13, v14, s[12:13]
  s_mov_b32 s42, 0
L_hs_poll:
  global_load_dword v14, v13, s[12:13] sc1
  s_waitcnt vmcnt(0)
  v_readfirstlane_b32 s41, v14
  s_add_u32 s42, s42, 1
  s_cmp_ge_u32 s42, 0x100000
  s_cbranch_scc1 L_hs_done
  s_cmp_ge_u32 s41, 8
  s_cbranch_scc1 L_hs_done
  s_sleep 2
  s_branch L_hs_poll
L_hs_done:
  s_mov_b64 exec, -1
L_nohs:
  s_lshl_b32 s41, s3, 2
  s_add_u32 s40, s40, s41
  s_waitcnt vmcnt(0)
""")
    def unpack_bias():
        for t in range(4):
            b = BIAS + 4*t
            A(f"  v_lshlrev_b32 v{b}, 16, v{b+2}\n  v_and_b32 v{b+1}, s33, v{b+2}\n  v_lshlrev_b32 v{b+2}, 16, v{b+3}\n  v_and_b32 v{b+3}, s33, v{b+3}")
    unpack_bias()
    stamp("pre-B0")
    A("  s_barrier")
    stamp("post-B0")
    for t in range(4):
        if t: A(f"  v_xor_b32 v13, {32*t}, v{vLW}")
        ar = vLW if t == 0 else 13
        for mt in range(4):
            a, tt = t // 2, t % 2
            d = XL + (mt*2+a)*4 + tt*2
            A(f"  ds_read_b64 v[{d}:{d+1}], v{ar} offset:{mt*2048}")
    def wread(sb, s, t, u): return f"ds_read_b64_tr_b16 v[{WF+sb*16+t*4+u*2}:{WF+sb*16+t*4+u*2+1}], v{vWA+t} offset:{s*8192+u*4096}"
    def xread(sb, s, mt): return f"ds_read_b128 v[{XF+sb*16+mt*4}:{XF+sb*16+mt*4+3}], v{vXA+s} offset:{mt*2048}"
    for t in range(4):
        for u in range(2): A("  " + wread(0, 0, t, u))
    A("  s_waitcnt lgkmcnt(8)")
    for t in range(4):
        for mt in range(4):
            a, tt = t // 2, t % 2
            d = XL + (mt*2+a)*4 + tt*2
            x = X0F + (t*4+mt)*4
            A(f"  v_lshlrev_b32 v{x}, 16, v{d}\n  v_and_b32 v{x+1}, s33, v{d}\n  v_lshlrev_b32 v{x+2}, 16, v{d+1}\n  v_and_b32 v{x+3}, s33, v{d+1}")
    A("L_layer:                             ; x fragments of step 0 still to be read")
    for mt in range(4): A("  " + xread(0, 0, mt))
    seq_names = ["w00","w01","x0","x1","x2","x3","w10","w11","w20","w21","w30","w31"]
    def rd(name_, sb, s):
        if name_[0] == "w": return wread(sb, s, int(name_[1]), int(name_[2]))
        return xread(sb, s, int(name_[1]))
    def need_idx(seq, i):
        t, mt = i // 4, i % 4
        idx = -1
        for k, n in enumerate(seq):
            if n == f"w{t}0" or n == f"w{t}1" or n == f"x{mt}": idx = max(idx, k)
        return idx
    def step(sb, prev_seq, nxt_seq, nxt_s, gaps, barrier_at=None, cbias=False, extra=None, prev_done=False):
        issued = 0; have = len(prev_seq) if prev_done else -1
        per = {g: [] for g in range(16)}
        for n, g in zip(nxt_seq, gaps): per[g].append(n)
        for i in range(16):
            t, mt = i // 4, i % 4
            if barrier_at is not None and i == barrier_at:
                A("  s_waitcnt lgkmcnt(0)\n  s_barrier"); have = len(prev_seq)
            need = need_idx(prev_seq, i)
            if i == 0: need = max(need, need_idx(prev_seq, 3))
            if need > have:
                w = (len(prev_seq) - 1 - need) + issued
                A(f"  s_waitcnt lgkmcnt({min(w, 15)})"); have = need
            d = ACC + (t*4+mt)*4
            c = f"v[{BIAS+4*t}:{BIAS+4*t+3}]" if cbias else f"v[{d}:{d+3}]"
            A(f"  v_mfma_f32_16x16x32_bf16 v[{d}:{d+3}], v[{WF+sb*16+t*4}:{WF+sb*16+t*4+3}], v[{XF+sb*16+mt*4}:{XF+sb*16+mt*4+3}], {c}")
            for n in per[i]: A("  " + rd(n, sb ^ 1, nxt_s)); issued += 1
            if extra and i in extra: A(extra[i])
    adv = {12: f"  s_add_u32 s35, s35, s37\n  s_cmp_eq_u32 s35, s38\n  s_cselect_b32 s36, s39, s37\n  s_cselect_b32 s35, 0, s35",
           13: f"  v_add_u32 v{vWA}, s36, v{vWA}\n  v_add_u32 v{vXA}, s36, v{vXA}",
           14: f"  v_add_u32 v{vWA+1}, s36, v{vWA+1}\n  v_add_u32 v{vXA+1}, s36, v{vXA+1}",
           15: f"  v_add_u32 v{vWA+2}, s36, v{vWA+2}\n  v_add_u32 v{vWA+3}, s36, v{vWA+3}"}
    first_seq = ["w00","w01","w10","w11","w20","w21","w30","w31","x0","x1","x2","x3"]
    gA = list(range(12)); gB = list(range(4, 16))
    step(0, first_seq, seq_names, 1, gA, cbias=True, extra=adv)
    A(f"""
  s_cmp_eq_u32 s34, 0
  s_cbranch_scc1 L_noflag
  s_waitcnt vmcnt(0)
  v_mov_b32 v13, s40
  v_mov_b32 v14, 1
  s_mov_b64 exec, 1
  global_store_dword v13, v14, s[14:15] sc1
  s_mov_b64 exec, -1
  s_add_u32 s40, s40, 128
L_noflag:
  v_add_u32 v{vBO}, 0x800, v{vBO}
  s_cmp_eq_u32 s34, 2
  s_cbranch_scc1 L_nobias
""")
    for t in range(4): A(f"  global_load_dwordx2 v[{BIAS+4*t+2}:{BIAS+4*t+3}], v{vBO}, s[8:9] offset:{t*32}")
    A("L_nobias:\n  s_mov_b32 s41, 1")
    step(1, seq_names, seq_names, 0, gB)
    A("L_stageA:")
    step(0, seq_names, seq_names, 1, gA, extra=adv)
    A("  s_cmp_eq_u32 s41, 15\n  s_cbranch_scc1 L_lastB\n")
    step(1, seq_names, seq_names, 0, gB, barrier_at=4)
    A("  s_add_u32 s41, s41, 1\n  s_branch L_stageA")
    A("L_lastB:")
    wonly = [n for n in seq_names if n[0] == "w"]
    step(1, seq_names, wonly, 0, list(range(4, 12)), barrier_at=4)
    stamp_k = stamp_idx[0]
    if STAMP:
        A("  s_memrealtime s[62:63]\n  s_waitcnt lgkmcnt(0)\n  s_lshl_b32 s61, s34, 1\n  s_add_u32 s61, s61, 8\n  v_mov_b32 v14, s62\n  v_cmp_eq_u32 vcc, s61, v0\n  s_nop 1\n  v_cndmask_b32 v3, v3, v14, vcc")
    A("  s_cmp_eq_u32 s34, 2\n  s_cbranch_scc1 L_final")
    A(f"""
  s_lshl_b32 s42, s27, 15
  s_add_u32 s42, s42, s35
  s_sub_u32 s43, s42, s38
  s_cmp_ge_u32 s42, s38
  s_cselect_b32 s42, s43, s42
  s_lshl_b32 s43, s28, 13
  s_add_u32 s42, s42, s43
  s_add_u32 s42, s42, {XOFF}
  v_lshl_add_u32 v{vLW}, v0, 4, s42
  s_lshl_b32 s44, s34, 23
""")
    def epi_math(mt, a):
        for tt in range(2):
            t = 2*a + tt
            d = XL + (mt*2+a)*4 + tt*2
            acc = ACC + (t*4+mt)*4; x0 = X0F + (t*4+mt)*4
            T = [BIAS + 4*k + h for k in (2*tt, 2*tt+1) for h in (0, 1)]
            A(f"  v_lshlrev_b32 v{T[0]}, 16, v{d}\n  v_and_b32 v{T[1]}, s33, v{d}\n  v_lshlrev_b32 v{T[2]}, 16, v{d+1}\n  v_and_b32 v{T[3]}, s33, v{d+1}")
            for r in range(4): A(f"  v_fma_f32 v{T[r]}, v{x0+r}, v{acc+r}, v{T[r]}")
            A(f"  v_cvt_pk_bf16_f32 v{d}, v{T[0]}, v{T[1]}\n  v_cvt_pk_bf16_f32 v{d+1}, v{T[2]}, v{T[3]}")
    for a in range(2):
        for mt in range(4):
            epi_math(mt, a)
            f = XL + (mt*2+a)*4
            off = (mt*2+a)*1024
            A(f"  ds_write_b128 v{vLW}, v[{f}:{f+3}] offset:{off}")
            if off < 4096: A(f"  buffer_store_dwordx4 v[{f}:{f+3}], v{vST}, s[20:23], s44 offen offset:{off}{SC}")
            else: A(f"  buffer_store_dwordx4 v[{f}:{f+3}], v15, s[20:23], s44 offen offset:{off-4096}{SC}")
            if a == 0 and mt == 0: A(f"  v_add_u32 v15, 0x1000, v{vST}")
    A(f"""
  s_lshl_b32 s42, s28, 13
  s_add_u32 s42, s42, s35
  s_add_u32 s42, s42, {XOFF}
  v_lshl_add_u32 v{vXA}, v0, 4, s42
  v_add_u32 v{vXA+1}, 0x400, v{vXA}
  s_waitcnt vmcnt(8)
""")
    unpack_bias()
    A("  s_add_u32 s34, s34, 1")
    A("  s_waitcnt lgkmcnt(0)\n  s_barrier                          ; B'")
    if STAMP:
        A("  s_memrealtime s[62:63]\n  s_waitcnt lgkmcnt(0)\n  s_lshl_b32 s61, s34, 1\n  s_add_u32 s61, s61, 7\n  v_mov_b32 v14, s62\n  v_cmp_eq_u32 vcc, s61, v0\n  s_nop 1\n  v_cndmask_b32 v3, v3, v14, vcc")
    A("  s_branch L_layer")
    STG = 3*SLOT; ROWB = 272
    A("L_final:")
    A(f"""
  v_and_b32 v13, 15, v0             ; m
  v_lshrrev_b32 v14, 4, v0          ; q
  v_mul_u32_u24 v13, {ROWB}, v13
  v_lshl_add_u32 v13, v14, 3, v13   ; + q*8
  s_mul_i32 s42, s28, {64*ROWB}
  s_lshl_b32 s43, s27, 7
  s_add_u32 s42, s42, s43
  s_add_u32 s42, s42, {STG}
  v_add_u32 v{vLW}, s42, v13
""")
    for a in range(2):
        for mt in range(4):
            epi_math(mt, a)
            f = XL + (mt*2+a)*4
            for tt in range(2):
                t = 2*a + tt
                A(f"  ds_write_b64 v{vLW}, v[{f+2*tt}:{f+2*tt+1}] offset:{mt*16*ROWB + t*32}")
    A("  s_waitcnt lgkmcnt(0)\n  s_barrier                          ; B_fin")
    A("L_out:                               ; all 8 waves: copy the staged tile to out")
    A(f"""
  v_lshrrev_b32 v13, 4, v0
  v_and_b32 v14, 15, v0
  s_lshl_b32 s42, s3, 4
  v_add_u32 v13, s42, v13
  v_mul_u32_u24 v15, {ROWB}, v13
  v_lshl_add_u32 v15, v14, 4, v15
  v_add_u32 v15, {STG}, v15
  s_lshl_b32 s42, s16, 7
  v_add_u32 v13, s42, v13
  v_lshlrev_b32 v13, 11, v13
  v_lshl_add_u32 v13, v14, 4, v13
  s_lshl_b32 s42, s18, 8
  v_add_u32 v13, s42, v13
  s_mov_b32 s24, s10
  s_mov_b32 s25, s11
  s_mov_b32 s26, 0x800000
  s_mov_b32 s27, 0x20000
""")
    for i in range(4): A(f"  ds_read_b128 v[{32+4*i}:{35+4*i}], v15 offset:{i*4*ROWB}")
    for i in range(4):
        A(f"  s_waitcnt lgkmcnt({3-i})")
        A(f"  buffer_store_dwordx4 v[{32+4*i}:{35+4*i}], v13, s[24:27], 0 offen")
        if i < 3: A("  v_add_u32 v13, 0x2000, v13")
    if STAMP:
        A("""  s_cmp_lg_u32 s3, 0
  s_cbranch_scc1 L_end
  s_waitcnt vmcnt(0)
  s_memrealtime s[62:63]
  s_waitcnt lgkmcnt(0)""")
        for lane, reg in ((0, "s60"), (1, "s64"), (2, "s65"), (3, "s62")):
            A(f"  v_mov_b32 v14, {reg}\n  v_cmp_eq_u32 vcc, {lane}, v0\n  s_nop 1\n  v_cndmask_b32 v3, v3, v14, vcc")
        A(f"""  s_lshl_b32 s42, s2, 8
  s_add_u32 s42, s42, {WS_STAMP}
  v_lshl_add_u32 v13, v0, 2, s42
  global_store_dword v13, v3, s[14:15]
  s_waitcnt vmcnt(0)""")
    A("  s_endpgm")

    A("L_wload:")
    A("""
  s_sub_u32 s19, s3, 4              ; Lw
  v_lshrrev_b32 v1, 4, v0           ; r4
  v_and_b32 v2, 15, v0              ; p
  v_lshlrev_b32 v3, 1, v1
  v_xor_b32 v2, v2, v3              ; p ^ (2*r4)
  v_lshlrev_b32 v2, 4, v2
  v_lshl_add_u32 v4, v1, 11, v2
  v_xor_b32 v3, 128, v4
  v_add_u32 v5, 15360, v3
  v_add_u32 v6, 30720, v4
  v_add_u32 v7, 46080, v3
  s_lshl_b32 s30, s18, 1            ; ks = 2j
  s_mov_b32 s31, 17
  s_lshl_b32 s32, s19, 16
  s_lshl_b32 s36, s18, 8
  s_add_u32 s32, s32, s36           ; + j*256
  s_mov_b32 s33, 8192
  s_lshl_b32 s35, s19, 13           ; Lw*8192
  s_mov_b32 s38, 0
  s_mov_b32 s39, 1
  s_mov_b32 s41, 0
  s_waitcnt lgkmcnt(0)
  s_mov_b32 s20, s6
  s_mov_b32 s21, s7
  s_mov_b32 s22, 0x600000
  s_mov_b32 s23, 0x20000
  v_mov_b32 v8, v4
  v_add_u32 v9, 7168, v3
  v_add_u32 v10, 14336, v4
  v_add_u32 v11, 21504, v3
  s_branch L_lcommon
L_xload:
  s_sub_u32 s19, s3, 6              ; Lx
  v_lshrrev_b32 v1, 3, v0           ; r8
  v_and_b32 v2, 7, v0               ; p8
  v_lshrrev_b32 v3, 1, v1
  v_xor_b32 v2, v2, v3              ; p8 ^ (r8>>1)
  v_lshlrev_b32 v2, 4, v2
  v_lshl_add_u32 v4, v1, 11, v2
  v_xor_b32 v3, 64, v4
  v_add_u32 v5, 15360, v3
  v_add_u32 v6, 30720, v4
  v_add_u32 v7, 46080, v3
  s_lshl_b32 s30, s18, 1            ; ks = 2j
  s_mov_b32 s31, 7
  s_lshl_b32 s32, s16, 18
  s_lshl_b32 s36, s19, 17
  s_add_u32 s32, s32, s36
  s_mov_b32 s33, 65536
  s_lshl_b32 s35, s19, 13
""")
    A(f"  s_add_u32 s35, s35, {XOFF}")
    A("""  s_mov_b32 s38, 1
  s_mov_b32 s39, 0
  s_mov_b32 s41, 1
  v_mov_b32 v8, v4
  v_mov_b32 v9, v5
  v_mov_b32 v10, v6
  v_mov_b32 v11, v7
  s_waitcnt lgkmcnt(0)
  s_mov_b32 s20, s4
  s_mov_b32 s21, s5
  s_mov_b32 s22, 0x800000
  s_mov_b32 s23, 0x20000
L_lcommon:
  s_mov_b32 s34, 0
  s_mov_b32 s40, 0
  s_mov_b32 s43, 5
L_lpro:
  s_call_b64 s[44:45], L_issue
  s_sub_u32 s43, s43, 1
  s_cmp_lg_u32 s43, 0
  s_cbranch_scc1 L_lpro
L_llayer:
  s_cmp_eq_u32 s41, 0
  s_cbranch_scc1 L_lb_wait
  s_cmp_eq_u32 s40, 0
  s_cbranch_scc1 L_lb_wait
  s_barrier                          ; B'
""")
    A(f"""  s_cmp_eq_u32 s40, 1
  s_cbranch_scc0 L_xl2
  s_mov_b32 s20, s14
  s_mov_b32 s21, s15
  s_mov_b32 s22, {2*WS_X}
  s_mov_b32 s23, 0x20000
  v_lshlrev_b32 v4, 4, v0
  v_mov_b32 v5, v4
  v_mov_b32 v6, v4
  v_mov_b32 v7, v4
  s_mov_b32 s31, 14
  s_mov_b32 s33, 4096
  s_lshl_b32 s32, s16, 18
  s_lshl_b32 s36, s19, 13
  s_add_u32 s32, s32, s36
  v_and_b32 v13, 31, v0
  s_lshl_b32 s36, s16, 8
  s_add_u32 s36, s36, {WS_FLAGS}
  v_lshl_add_u32 v13, v13, 2, s36
  s_lshl_b32 s36, s18, 2
  s_lshl_b32 s48, 15, s36
  s_mov_b32 s49, s48
  s_branch L_xpoll0
L_xl2:
  s_add_u32 s32, s32, {WS_X}
  v_add_u32 v13, 128, v13
L_xpoll0:
  s_add_u32 s30, s30, 2
  s_and_b32 s30, s30, 15
  s_add_u32 s34, s34, {SLOT}
  s_cmp_eq_u32 s34, {RING}
  s_cselect_b32 s34, 0, s34
  s_add_u32 s34, s34, {SLOT}
  s_cmp_eq_u32 s34, {RING}
  s_cselect_b32 s34, 0, s34
  s_mov_b32 s42, 0
L_xpoll:
  global_load_dword v14, v13, s[14:15] sc1
  s_waitcnt vmcnt(0)
  v_cmp_ne_u32 vcc, 0, v14
  s_add_u32 s42, s42, 1
  s_nop 0
  s_or_b64 s[46:47], vcc, s[48:49]
  s_cmp_eq_u64 s[46:47], -1
  s_cbranch_scc1 L_xgo
  s_cmp_ge_u32 s42, 0x100000
  s_cbranch_scc1 L_xgo
  s_sleep {o["pollsleep"]}
  s_branch L_xpoll
L_xgo:
  s_call_b64 s[44:45], L_issue
  s_call_b64 s[44:45], L_issue
  s_call_b64 s[44:45], L_issue
  s_branch L_lb2
L_lb_wait:
  s_waitcnt vmcnt(24)
  s_barrier                          ; B'
L_lb2:
  s_waitcnt vmcnt(16)
  s_barrier                          ; B_2
  s_call_b64 s[44:45], L_issue
  s_call_b64 s[44:45], L_issue
  s_cmp_eq_u32 s40, 2
  s_cselect_b32 s43, 9, 14
  s_cmp_eq_u32 s41, 0
  s_cselect_b32 s43, s43, 9
  s_mov_b32 s46, s43
L_luni:
  s_waitcnt vmcnt(24)
  s_barrier
  s_call_b64 s[44:45], L_issue
  s_sub_u32 s43, s43, 1
  s_cmp_lg_u32 s43, 0
  s_cbranch_scc1 L_luni
  s_cmp_eq_u32 s46, 14
  s_cbranch_scc1 L_lnext
  s_waitcnt vmcnt(24)
  s_barrier
  s_waitcnt vmcnt(16)
  s_barrier
  s_waitcnt vmcnt(8)
  s_barrier
  s_waitcnt vmcnt(0)
  s_barrier
  s_barrier
L_lnext:
  s_add_u32 s40, s40, 1
  s_cmp_lt_u32 s40, 3
  s_cbranch_scc1 L_llayer
  s_barrier                          ; B_fin
  s_branch L_out
L_issue:
  s_lshl_b32 s36, s30, s31
  s_add_u32 s36, s36, s32
  s_add_u32 s37, s34, s35
  s_mov_b32 m0, s37
  s_add_u32 s37, s37, 0x1000
""")
    for i in range(4): A(f"  buffer_load_dwordx4 v{4+i}, s[20:23], s36 offen offset:{i*1024}{DSC} lds")
    A("  s_mov_b32 m0, s37\n  s_add_u32 s36, s36, s33")
    for i in range(4): A(f"  buffer_load_dwordx4 v{4+i}, s[20:23], s36 offen offset:{i*1024}{DSC} lds")
    A(f"""  s_add_u32 s30, s30, 1
  s_and_b32 s30, s30, 15
  s_add_u32 s34, s34, {SLOT}
  s_cmp_eq_u32 s34, {RING}
  s_cselect_b32 s34, 0, s34
  s_add_u32 s38, s38, s39
  s_and_b32 s36, s38, 15
  s_cbranch_scc1 L_issue_ret
  s_add_u32 s32, s32, 0x200000
  s_mov_b32 s33, 32768
  v_mov_b32 v4, v8
  v_mov_b32 v5, v9
  v_mov_b32 v6, v10
  v_mov_b32 v7, v11
L_issue_ret:
  s_setpc_b64 s[44:45]
L_end:
  s_endpgm
L_code_end:
""")
    A(kernel_desc(name, 256, 96, 256))
    return A.text()

if __name__ == "__main__":
    out = sys.argv[1]
    kw = {}
    for a in sys.argv[2:]:
        k, v = a.split("="); kw[k] = int(v) if v.lstrip("-").isdigit() else v
    open(out, "w").write(gen(**kw))
```

```python
import sys
from asmlib import Asm, kernel_desc

DEFAULTS = dict(xst='', pk=1, stamp=0, pollsleep=1, force_slow=0, wbl2=0, touch=1, pf=1, cprio=0, lprio=0, wbstage=6,
                name="standalone__cross_network_dcn__recsys_kernel")

def gen(**kw):
    o = dict(DEFAULTS); o.update(kw)
    name = o["name"]; STAMP = o["stamp"]; LSTAMP = o["stamp"] >= 2
    A = Asm()
    SLOT = 32768; NSLOT = 5; RING = SLOT*NSLOT
    XOFF = 16384
    WS_X = 0x800000; WS_FLAGS = 0x1000000; WS_STAMP = 0x2000000
    vXA = 4; vWA = 6; vLW = 10; vST = 11; vBO = 12
    BIAS = 16; WF = 32; XF = 64; XL = 96; X0F = 128; ACC = 192
    vSTAMP = 3
    BST = 8

    hdr  = "; Fused 3-layer DCN cross network: x_{l+1} = x0*(x_l W_l + b_l) + x_l, bf16, B=4096, D=1024.\n"
    hdr += "; One persistent launch: 256 workgroups (128x128 tile each), 4 MFMA waves + 2 W-loader + 2 x-loader waves.\n"
    hdr += "; @launch grid=(256,1,1) block=(512,1,1) lds=163840\n"
    hdr += '.amdgcn_target "amdgcn-amd-amdhsa--gfx950"\n.text\n'
    hdr += f".globl {name}\n.p2align 8\n.type {name},@function\n{name}:\n"
    A(hdr)
    def vstamp(vreg, lane_expr_sreg=None, lane=None, tmpv=2, stmp="s61"):
        if not STAMP: return ""
        s = "  s_memrealtime s[62:63]\n  s_waitcnt lgkmcnt(0)\n"
        if lane_expr_sreg is not None:
            s += f"  s_add_u32 {stmp}, {lane_expr_sreg}, {lane}\n  v_cmp_eq_u32 vcc, {stmp}, v0\n"
        else:
            s += f"  v_cmp_eq_u32 vcc, {lane}, v0\n"
        s += f"  v_mov_b32 v{tmpv}, s62\n  s_nop 0\n  v_cndmask_b32 v{vreg}, v{vreg}, v{tmpv}, vcc"
        return s
    if STAMP: A("  s_memrealtime s[70:71]")
    A("""  s_cmp_ge_u32 s2, 256
  s_cbranch_scc1 L_end
  s_load_dwordx8 s[4:11], s[0:1], 0
  s_load_dwordx4 s[12:15], s[0:1], 32
  v_lshrrev_b32 v1, 6, v0
  v_and_b32 v0, 63, v0
  v_readfirstlane_b32 s3, v1
  s_and_b32 s16, s2, 7
  s_lshr_b32 s17, s2, 3
  s_and_b32 s18, s17, 7
  s_lshr_b32 s17, s17, 3            ; q
  s_lshl_b32 s16, s16, 2
  s_add_u32 s16, s16, s17
  s_mov_b32 s30, 0
  s_cmp_lt_u32 s3, 4
  s_cbranch_scc1 L_compute
  s_cmp_ge_u32 s3, 6
  s_cbranch_scc1 L_xload""")
    bidx = "s61"
    W2T = ''
    if o['touch'] == 1: W2T = '  s_cmp_lg_u32 s19, 0\n  s_cbranch_scc1 L_now2\n  v_add_u32 v1, 0x400000, v1\n  global_load_dword v12, v1, s[6:7]'
    if o['touch'] == 2: W2T = '  s_cmp_lg_u32 s19, 0\n  s_cbranch_scc1 L_w1t\n  v_add_u32 v1, 0x400000, v1\nL_w1t:\n  global_load_dword v12, v1, s[6:7]'
    def LB():
        if not LSTAMP: return "  s_barrier"
        return (vstamp(20, bidx, 0, tmpv=22, stmp="s60") + "\n  s_barrier\n" + vstamp(21, bidx, 0, tmpv=22, stmp="s60") + f"\n  s_add_u32 {bidx}, {bidx}, 1")
    A(f"""  s_sub_u32 s19, s3, 4              ; Lw
  v_lshrrev_b32 v1, 4, v0           ; r4
  v_and_b32 v2, 15, v0              ; p
  v_lshlrev_b32 v3, 1, v1
  v_xor_b32 v3, v2, v3              ; p ^ (2*r4)
  v_lshlrev_b32 v3, 4, v3
  v_lshl_add_u32 v4, v1, 11, v3
  v_xor_b32 v3, 128, v4
  v_add_u32 v5, 15360, v3
  v_add_u32 v6, 30720, v4
  v_add_u32 v7, 46080, v3
  v_add_u32 v9, 7168, v3
  v_add_u32 v11, 21504, v3
  v_mov_b32 v8, v4
  v_add_u32 v10, 14336, v4
  ; touch address (memory-side prefetch): W_Lw, 64 lines of this workgroup's share
  s_lshl_b32 s36, s2, 13
  s_lshl_b32 s37, s19, 21
  s_add_u32 s36, s36, s37
  v_lshl_add_u32 v1, v0, 7, s36
  s_lshl_b32 s37, s18, 8
  s_mov_b32 s31, 17
  s_lshl_b32 s32, s19, 16
  s_add_u32 s32, s32, s37           ; + j*256
  s_mov_b32 s33, 8192
  s_lshl_b32 s35, s19, 13           ; Lw*8192
  s_mov_b32 s38, 0
  s_mov_b32 s39, 1
  s_mov_b32 s41, 0
  s_waitcnt lgkmcnt(0)
  s_mov_b32 s20, s6
  s_mov_b32 s21, s7
  s_mov_b32 s22, 0x600000
  s_mov_b32 s23, 0x20000""")
    A(f"""  s_branch L_lcommon
L_xload:
  s_sub_u32 s19, s3, 6              ; Lx
  v_lshrrev_b32 v1, 3, v0           ; r8
  v_and_b32 v2, 7, v0               ; p8
  v_lshrrev_b32 v3, 1, v1
  v_xor_b32 v2, v2, v3              ; p8 ^ (r8>>1)
  v_lshlrev_b32 v2, 4, v2
  v_lshl_add_u32 v4, v1, 11, v2
  v_xor_b32 v3, 64, v4
  v_add_u32 v5, 15360, v3
  v_add_u32 v6, 30720, v4
  v_add_u32 v7, 46080, v3
  s_mov_b32 s31, 7
  s_lshl_b32 s32, s16, 18
  s_lshl_b32 s36, s19, 17
  s_add_u32 s32, s32, s36
  s_lshl_b32 s36, s18, 1
  s_add_u32 s36, s36, s19
  s_lshl_b32 s36, s36, 14
  s_lshl_b32 s37, s16, 18
  s_add_u32 s36, s36, s37
  v_lshl_add_u32 v1, v0, 7, s36     ; touch: 2 x 8KB contiguous of this group's x0 rows
  s_mov_b32 s33, 65536
  s_lshl_b32 s35, s19, 13
  s_add_u32 s35, s35, {XOFF}
  s_mov_b32 s38, 1
  s_mov_b32 s39, 0
  s_mov_b32 s41, 1
  v_mov_b32 v8, v4
  v_mov_b32 v9, v5
  v_mov_b32 v10, v6
  v_mov_b32 v11, v7
  s_waitcnt lgkmcnt(0)
  s_mov_b32 s20, s4
  s_mov_b32 s21, s5
  s_mov_b32 s22, 0x800000
  s_mov_b32 s23, 0x20000""")
    A("L_lcommon:")
    if LSTAMP: A("  s_memrealtime s[72:73]\n  s_waitcnt lgkmcnt(0)\n  s_mov_b32 s61, 0")
    if o["lprio"]: A(f"  s_setprio {o['lprio']}")
    def SS(r): return f"  s_memrealtime s[{r}:{r+1}]\n  s_waitcnt lgkmcnt(0)" if LSTAMP else ""
    A(f"""  s_mov_b32 s34, 0
  s_mov_b32 s40, 0
  s_mov_b32 s50, 0
  s_call_b64 s[44:45], L_issue
{SS(74)}
  s_call_b64 s[44:45], L_issue
{SS(76)}""")
    if o["touch"]:
        A("""  s_cmp_eq_u32 s41, 0
  s_cbranch_scc1 L_wtouch
  global_load_dword v12, v1, s[4:5]
  v_add_u32 v1, 0x2000, v1
  global_load_dword v12, v1, s[4:5]
  s_waitcnt vmcnt(2)
  s_branch L_touched
L_wtouch:""")
        if o["touch"] == 1:
            A("  global_load_dword v12, v1, s[6:7]\n  s_waitcnt vmcnt(1)")
        else:
            A("  s_cmp_lg_u32 s19, 0\n  s_cbranch_scc1 L_wt1\n  global_load_dword v12, v1, s[6:7]\n  s_waitcnt vmcnt(1)\n  s_branch L_touched\nL_wt1:\n  s_waitcnt vmcnt(0)")
        A("L_touched:")
    else:
        A("  s_waitcnt vmcnt(0)")
    A(f"""{SS(78)}
{LB()}
  s_call_b64 s[44:45], L_issue
  s_call_b64 s[44:45], L_issue
  s_call_b64 s[44:45], L_issue
{SS(80)}""")
    A(f"""  s_branch L_lb2
L_llayer:
  s_cmp_eq_u32 s41, 0
  s_cbranch_scc1 L_lb_wait
{LB()}
  s_cmp_eq_u32 s40, 1
  s_cbranch_scc0 L_xl2
  s_mov_b32 s20, s14
  s_mov_b32 s21, s15
  s_mov_b32 s22, {2*WS_X}
  s_mov_b32 s23, 0x20000
  v_lshlrev_b32 v4, 4, v0
  v_mov_b32 v5, v4
  v_mov_b32 v6, v4
  v_mov_b32 v7, v4
  s_mov_b32 s31, 14
  s_mov_b32 s33, 4096
  s_lshl_b32 s32, s16, 18
  s_lshl_b32 s36, s19, 13
  s_add_u32 s32, s32, s36
  v_and_b32 v13, 31, v0
  s_lshl_b32 s36, s16, 8
  s_add_u32 s36, s36, {WS_FLAGS}
  v_lshl_add_u32 v13, v13, 2, s36
  s_lshl_b32 s36, s18, 2
  s_lshl_b32 s48, 15, s36
  s_mov_b32 s49, s48
  s_branch L_xpoll0
L_xl2:
  s_add_u32 s32, s32, {WS_X}
  v_add_u32 v13, 128, v13
L_xpoll0:
  s_lshl_b32 s30, s18, 1
  s_add_u32 s30, s30, 2
  s_and_b32 s30, s30, 15
  s_add_u32 s34, s34, {SLOT}
  s_cmp_eq_u32 s34, {RING}
  s_cselect_b32 s34, 0, s34
  s_add_u32 s34, s34, {SLOT}
  s_cmp_eq_u32 s34, {RING}
  s_cselect_b32 s34, 0, s34
  s_mov_b32 s42, 0
L_xpoll:
  global_load_dword v14, v13, s[14:15] sc1
  s_waitcnt vmcnt(0)
  v_cmp_ne_u32 vcc, 0, v14
  s_add_u32 s42, s42, 1
  s_nop 0
  s_or_b64 s[46:47], vcc, s[48:49]
  s_cmp_eq_u64 s[46:47], -1
  s_cbranch_scc1 L_xgo
  s_cmp_ge_u32 s42, 0x100000
  s_cbranch_scc1 L_xgo
  s_sleep {o["pollsleep"]}
  s_branch L_xpoll
L_xgo:
{vstamp(21, "s40", 50, tmpv=22, stmp="s60") if LSTAMP else ""}
  s_call_b64 s[44:45], L_issue
  s_call_b64 s[44:45], L_issue
{vstamp(21, "s40", 53, tmpv=22, stmp="s60") if LSTAMP else ""}
  s_waitcnt vmcnt(8)
{LB()}
  s_call_b64 s[44:45], L_issue
  s_branch L_lb2i
L_lb_wait:
  s_waitcnt vmcnt(24)
{LB()}
L_lb2:
  s_waitcnt vmcnt(16)
{LB()}
L_lb2i:
  s_call_b64 s[44:45], L_issue
  s_call_b64 s[44:45], L_issue
  s_or_b32 s36, s40, s41
  s_cbranch_scc1 L_now2
{W2T}
L_now2:
  s_cmp_eq_u32 s40, 2
  s_cselect_b32 s43, 9, 14
  s_cmp_eq_u32 s41, 0
  s_cselect_b32 s43, s43, 9
  s_mov_b32 s46, s43
L_luni:
  s_waitcnt vmcnt(24)
{LB()}
  s_call_b64 s[44:45], L_issue
  s_sub_u32 s43, s43, 1
  s_cmp_lg_u32 s43, 0
  s_cbranch_scc1 L_luni
  s_cmp_eq_u32 s46, 14
  s_cbranch_scc1 L_lnext
  s_waitcnt vmcnt(24)
{LB()}
  s_waitcnt vmcnt(16)
{LB()}
  s_waitcnt vmcnt(8)
{LB()}
  s_waitcnt vmcnt(0)
{LB()}
  s_cmp_lg_u32 s40, 0
  s_cbranch_scc1 L_lb16
  s_cmp_eq_u32 s41, 0
  s_cbranch_scc1 L_lb16
  s_lshl_b32 s36, s16, 3
  v_mov_b32 v13, s36
  s_getreg_b32 s37, hwreg(HW_REG_XCC_ID, 0, 3)
  s_lshl_b32 s37, s37, 2
  s_lshl_b32 s37, 8, s37
  s_mov_b32 s42, 0
L_xhs:
  global_load_dwordx2 v[14:15], v13, s[12:13] sc1
  s_waitcnt vmcnt(0)
  v_readfirstlane_b32 s46, v14
  v_readfirstlane_b32 s47, v15
  s_add_u32 s42, s42, 1
  s_cmp_ge_u32 s42, 0x100000
  s_cbranch_scc1 L_xhs_done
  s_cmp_ge_u32 s46, 8
  s_cbranch_scc1 L_xhs_done
  s_sleep 2
  s_branch L_xhs
L_xhs_done:
  s_cmp_lg_u32 s47, s37
  s_cselect_b32 s50, 1, {o["force_slow"]}
L_lb16:
{LB()}
L_lnext:
  s_add_u32 s40, s40, 1
  s_cmp_lt_u32 s40, 3
  s_cbranch_scc1 L_llayer
{LB()}""")
    if LSTAMP:
        for ln, r in ((58,70),(59,72),(60,74),(61,76),(62,78),(63,80)):
            A(f"  v_mov_b32 v22, s{r}\n  v_cmp_eq_u32 vcc, {ln}, v0\n  s_nop 1\n  v_cndmask_b32 v20, v20, v22, vcc")
        A(f"""  s_and_b32 s36, s3, 1
  s_cmp_lg_u32 s36, 0
  s_cbranch_scc1 L_nodump
  s_lshl_b32 s36, s2, 10
  s_lshl_b32 s37, s41, 9
  s_add_u32 s36, s36, s37
  s_add_u32 s36, s36, {WS_STAMP + 0x100000}
  v_lshl_add_u32 v13, v0, 2, s36
  global_store_dword v13, v20, s[14:15]
  global_store_dword v13, v21, s[14:15] offset:256
L_nodump:""")
    A("""  s_branch L_out
L_issue:
  s_lshl_b32 s36, s30, s31
  s_add_u32 s36, s36, s32
  s_add_u32 s37, s34, s35
  s_mov_b32 m0, s37
  s_add_u32 s37, s37, 0x1000
  s_cmp_lg_u32 s50, 0
  s_cbranch_scc1 L_issue_coh""")
    for i in range(4): A(f"  buffer_load_dwordx4 v{4+i}, s[20:23], s36 offen offset:{i*1024} lds")
    A("  s_mov_b32 m0, s37\n  s_add_u32 s36, s36, s33")
    for i in range(4): A(f"  buffer_load_dwordx4 v{4+i}, s[20:23], s36 offen offset:{i*1024} lds")
    A(f"""L_issue_adv:
  s_add_u32 s30, s30, 1
  s_and_b32 s30, s30, 15
  s_add_u32 s34, s34, {SLOT}
  s_cmp_eq_u32 s34, {RING}
  s_cselect_b32 s34, 0, s34
  s_add_u32 s38, s38, s39
  s_and_b32 s36, s38, 15
  s_cbranch_scc1 L_issue_ret
  s_add_u32 s32, s32, 0x200000
  s_mov_b32 s33, 32768
  s_lshl_b32 s30, s18, 1
  v_mov_b32 v4, v8
  v_mov_b32 v5, v9
  v_mov_b32 v6, v10
  v_mov_b32 v7, v11
L_issue_ret:
  s_setpc_b64 s[44:45]
L_issue_coh:""")
    for i in range(4): A(f"  buffer_load_dwordx4 v{4+i}, s[20:23], s36 offen offset:{i*1024} sc1 lds")
    A("  s_mov_b32 m0, s37\n  s_add_u32 s36, s36, s33")
    for i in range(4): A(f"  buffer_load_dwordx4 v{4+i}, s[20:23], s36 offen offset:{i*1024} sc1 lds")
    A("  s_branch L_issue_adv")

    A("L_compute:")
    if STAMP: A("  s_memrealtime s[60:61]\n  s_waitcnt lgkmcnt(0)\n  s_mov_b32 s66, s60")
    A(f"""  s_and_b32 s27, s3, 1              ; wn
  s_lshr_b32 s28, s3, 1             ; wm
  v_lshrrev_b32 v2, 4, v0           ; q
  s_lshl_b32 s30, s18, 8
  s_lshl_b32 s31, s27, 7
  s_add_u32 s30, s30, s31
  v_lshl_add_u32 v{vBO}, v2, 3, s30
  v_lshlrev_b32 v14, 7, v0
  s_getpc_b64 s[46:47]
L_pc:
  s_sub_u32 s46, s46, L_pc-{name}
  s_subb_u32 s47, s47, 0
  s_waitcnt lgkmcnt(0)""")
    for t in range(4): A(f"  global_load_dwordx2 v[{BIAS+4*t+2}:{BIAS+4*t+3}], v{vBO}, s[8:9] offset:{t*32}")
    A("  s_cmp_eq_u32 s3, 3\n  s_cbranch_scc0 L_cpf_done")
    A(f"  v_min_u32 v14, L_end-{name}, v14\n  global_load_dword v1, v14, s[46:47]\n  v_lshlrev_b32 v14, 7, v0\n  v_add_u32 v14, 0x2000, v14\n  v_min_u32 v14, L_end-{name}, v14\n  global_load_dword v1, v14, s[46:47]")
    A("L_cpf_done:")
    A(f"""  ; flag byte offset: WS_FLAGS + mb*256 + (j*4+w)*4   (boundary b adds 128)
  s_lshl_b32 s40, s16, 8
  s_lshl_b32 s41, s18, 4
  s_add_u32 s40, s40, s41
  s_add_u32 s40, s40, {WS_FLAGS}
  s_cmp_lg_u32 s3, 0
  s_cbranch_scc1 L_nozero
  v_lshrrev_b32 v13, 2, v0
  v_and_b32 v14, 3, v0
  v_lshlrev_b32 v13, 7, v13
  v_lshl_add_u32 v13, v14, 2, v13
  v_add_u32 v13, s40, v13
  v_mov_b32 v14, 0
  s_mov_b64 exec, 0xff
  global_store_dword v13, v14, s[14:15] sc1
  s_mov_b64 exec, -1
L_nozero:
  s_lshl_b32 s41, s3, 2
  s_add_u32 s40, s40, s41
  v_bfe_u32 v15, v0, 2, 2           ; r
  v_and_b32 v3, 3, v0               ; c
  v_lshlrev_b32 v13, 2, v2
  v_add_u32 v13, v13, v15           ; 4q+r
  v_and_b32 v14, 7, v13
  v_lshlrev_b32 v13, 8, v13
  v_lshl_add_u32 v13, v3, 3, v13    ; (4q+r)*256 + 8c
  s_lshl_b32 s29, s27, 2            ; 4*wn
  v_xor_b32 v14, s29, v14           ; (4wn) ^ (k&7)""")
    for t in range(4):
        A(f"  v_xor_b32 v15, {t}, v14\n  v_lshl_add_u32 v{vWA+t}, v15, 5, v13")
    A(f"""  v_and_b32 v13, 15, v0             ; m
  v_lshrrev_b32 v14, 1, v13         ; f = m>>1
  v_xor_b32 v15, v2, v14            ; q ^ f
  v_lshlrev_b32 v15, 4, v15
  v_lshl_add_u32 v15, v13, 7, v15   ; m*128 + ..
  s_lshl_b32 s29, s28, 13           ; wm*8192
  s_add_u32 s29, s29, {XOFF}
  v_add_u32 v{vXA}, s29, v15
  v_xor_b32 v{vXA+1}, 64, v{vXA}
  v_lshrrev_b32 v15, 1, v2          ; q>>1
  v_xor_b32 v15, v15, v14           ; (q>>1) ^ f
  v_lshlrev_b32 v15, 4, v15
  v_lshl_add_u32 v15, v13, 7, v15
  v_and_b32 v14, 1, v2
  v_lshl_add_u32 v15, v14, 3, v15   ; + (q&1)*8
  v_add_u32 v{vLW}, s29, v15
  s_lshl_b32 s30, s18, 1
  s_add_u32 s30, s30, s27
  s_lshl_b32 s30, s30, 14
  s_lshl_b32 s31, s28, 13
  s_add_u32 s30, s30, s31
  s_lshl_b32 s31, s16, 18
  s_add_u32 s30, s30, s31
  v_lshl_add_u32 v{vST}, v0, 4, s30
  s_mov_b32 s20, s14
  s_mov_b32 s21, s15
  s_mov_b32 s22, {2*WS_X}
  s_mov_b32 s23, 0x20000
  s_mov_b32 s33, 0xffff0000
  s_mov_b32 s34, 0                  ; layer
  s_mov_b32 s35, 0
  s_mov_b32 s37, {SLOT}
  s_mov_b32 s38, {RING}
  s_mov_b32 s39, {(-RING + SLOT) & 0xffffffff}
  s_lshl_b32 s49, s18, 1
  s_add_u32 s49, s49, s27
  s_min_u32 s48, s49, {BST}
  s_mov_b64 s[50:51], 0""")
    if o["cprio"]: A(f"  s_setprio {o['cprio']}")
    A("""  s_cmp_eq_u32 s3, 3
  s_cbranch_scc1 L_bw3
  s_cmp_eq_u32 s3, 0
  s_cbranch_scc1 L_bw0
  s_waitcnt vmcnt(0)
  s_branch L_bw1
L_bw3:
  s_waitcnt vmcnt(2)
  s_branch L_bw1
L_bw0:
  s_waitcnt vmcnt(1)
L_bw1:""")
    def unpack_bias():
        for t in range(4):
            b = BIAS + 4*t
            A(f"  v_lshlrev_b32 v{b}, 16, v{b+2}\n  v_and_b32 v{b+1}, s33, v{b+2}\n  v_lshlrev_b32 v{b+2}, 16, v{b+3}\n  v_and_b32 v{b+3}, s33, v{b+3}")
    unpack_bias()
    A(vstamp(vSTAMP, None, 1))
    A("  s_barrier")
    A(vstamp(vSTAMP, None, 2))
    def wread(sb, s, t, u): return f"ds_read_b64_tr_b16 v[{WF+sb*16+t*4+u*2}:{WF+sb*16+t*4+u*2+1}], v{vWA+t} offset:{s*8192+u*4096}"
    def xread(sb, s, mt): return f"ds_read_b128 v[{XF+sb*16+mt*4}:{XF+sb*16+mt*4+3}], v{vXA+s} offset:{mt*2048}"
    for t in range(4):
        for u in range(2): A("  " + wread(0, 0, t, u))
    A("L_layer:                             ; x fragments of step 0 still to be read")
    for mt in range(4): A("  " + xread(0, 0, mt))
    seq_names = ["w00","w01","x0","x1","x2","x3","w10","w11","w20","w21","w30","w31"]
    def rd(n, sb, s): return wread(sb, s, int(n[1]), int(n[2])) if n[0] == "w" else xread(sb, s, int(n[1]))
    def need_idx(seq, i):
        t, mt = i // 4, i % 4
        return max(k for k, n in enumerate(seq) if n in (f"w{t}0", f"w{t}1", f"x{mt}"))
    def step(sb, prev_seq, nxt_seq, nxt_s, gaps, barrier_at=None, cbias=False, extra=None, fine=False):
        issued = 0; have = -1
        per = {g: [] for g in range(16)}
        for n, g in zip(nxt_seq, gaps): per[g].append(n)
        for i in range(16):
            t, mt = i // 4, i % 4
            if barrier_at is not None and i == barrier_at:
                A("  s_waitcnt lgkmcnt(0)\n  s_barrier"); have = len(prev_seq)
            need = need_idx(prev_seq, i)
            if i == 0 and not fine: need = max(need, need_idx(prev_seq, 3))
            if need > have:
                w = (len(prev_seq) - 1 - need) + issued
                A(f"  s_waitcnt lgkmcnt({min(w, 15)})"); have = need
            d = ACC + (t*4+mt)*4
            c = f"v[{BIAS+4*t}:{BIAS+4*t+3}]" if cbias else f"v[{d}:{d+3}]"
            A(f"  v_mfma_f32_16x16x32_bf16 v[{d}:{d+3}], v[{WF+sb*16+t*4}:{WF+sb*16+t*4+3}], v[{XF+sb*16+mt*4}:{XF+sb*16+mt*4+3}], {c}")
            for n in per[i]: A("  " + rd(n, sb ^ 1, nxt_s)); issued += 1
            if extra and i in extra: A(extra[i])
    def evchk(tag): return f"  s_cmp_eq_u32 s41, s48\n  s_cbranch_scc1 L_ev_{tag}\nL_evr_{tag}:"
    adv = {12: f"  s_add_u32 s35, s35, s37\n  s_cmp_eq_u32 s35, s38\n  s_cselect_b32 s36, s39, s37\n  s_cselect_b32 s35, 0, s35",
           13: f"  v_add_u32 v{vWA}, s36, v{vWA}\n  v_add_u32 v{vXA}, s36, v{vXA}",
           14: f"  v_add_u32 v{vWA+1}, s36, v{vWA+1}\n  v_add_u32 v{vXA+1}, s36, v{vXA+1}",
           15: f"  v_add_u32 v{vWA+2}, s36, v{vWA+2}\n  v_add_u32 v{vWA+3}, s36, v{vWA+3}"}
    first_seq = ["w00","w01","w10","w11","w20","w21","w30","w31","x0","x1","x2","x3"]
    gA = list(range(12)); gB = list(range(4, 16))
    step(0, first_seq, seq_names, 1, gA, cbias=True, extra=adv, fine=True)
    A(f"""  s_cmp_eq_u32 s34, 0
  s_cbranch_scc1 L_reg
{vstamp(vSTAMP, "s34", 20)}
  s_waitcnt vmcnt(0)
{vstamp(vSTAMP, "s34", 24)}
  v_mov_b32 v13, s40
  v_mov_b32 v14, 1
  s_mov_b64 exec, 1
  s_cmp_lg_u32 s50, 0
  s_cbranch_scc1 L_flag_coh
  global_store_dword v13, v14, s[14:15]
L_flag_done:
  s_mov_b64 exec, -1
  s_add_u32 s40, s40, 128
L_noflag:""")
    A("  s_mov_b32 s41, 0")
    step(1, seq_names, seq_names, 0, gB, extra={0: evchk("f")})
    A("  s_mov_b32 s41, 1")
    A("L_stageA:")
    step(0, seq_names, seq_names, 1, gA, extra=adv)
    A("  s_cmp_eq_u32 s41, 15\n  s_cbranch_scc1 L_lastB")
    step(1, seq_names, seq_names, 0, gB, barrier_at=4, extra={0: evchk("m")})
    A("  s_add_u32 s41, s41, 1\n  s_branch L_stageA")
    A("L_lastB:")
    wonly = [n for n in seq_names if n[0] == "w"]
    step(1, seq_names, wonly, 0, list(range(4, 12)), barrier_at=4, extra={0: evchk("l")})
    A(vstamp(vSTAMP, "s34", 8))
    A("  s_cmp_eq_u32 s34, 2\n  s_cbranch_scc1 L_final")
    A(f"""  s_lshl_b32 s42, s27, 15
  s_add_u32 s42, s42, s35
  s_sub_u32 s43, s42, s38
  s_cmp_ge_u32 s42, s38
  s_cselect_b32 s42, s43, s42
  s_lshl_b32 s43, s28, 13
  s_add_u32 s42, s42, s43
  s_add_u32 s42, s42, {XOFF}
  v_lshl_add_u32 v{vLW}, v0, 4, s42
  s_lshl_b32 s44, s34, 23
  s_cmp_eq_u32 s34, 0
  s_cbranch_scc0 L_epi1""")
    def epi_math(mt, a, first):
        for tt in range(2):
            t = 2*a + tt
            d = XL + (mt*2+a)*4 + tt*2
            acc = ACC + (t*4+mt)*4; x0 = X0F + (t*4+mt)*4
            T = [BIAS + 4*k + h for k in (2*tt, 2*tt+1) for h in (0, 1)]
            U = [x0 + r for r in range(4)] if first else T
            A(f"  v_lshlrev_b32 v{U[0]}, 16, v{d}\n  v_and_b32 v{U[1]}, s33, v{d}\n  v_lshlrev_b32 v{U[2]}, 16, v{d+1}\n  v_and_b32 v{U[3]}, s33, v{d+1}")
            if o["pk"]:
                for r in (0, 2): A(f"  v_pk_fma_f32 v[{T[r]}:{T[r]+1}], v[{x0+r}:{x0+r+1}], v[{acc+r}:{acc+r+1}], v[{U[r]}:{U[r]+1}]")
            else:
                for r in range(4): A(f"  v_fma_f32 v{T[r]}, v{x0+r}, v{acc+r}, v{U[r]}")
            A(f"  v_cvt_pk_bf16_f32 v{d}, v{T[0]}, v{T[1]}\n  v_cvt_pk_bf16_f32 v{d+1}, v{T[2]}, v{T[3]}")
    slow_blocks = []
    def epi(first, tag):
        k = 0
        for a in range(2):
            for mt in range(4):
                epi_math(mt, a, first)
                f = XL + (mt*2+a)*4
                off = (mt*2+a)*1024
                A(f"  ds_write_b128 v{vLW}, v[{f}:{f+3}] offset:{off}")
                ar, o2 = (vST, off) if off < 4096 else (15, off - 4096)
                st = f"  buffer_store_dwordx4 v[{f}:{f+3}], v{ar}, s[20:23], s44 offen offset:{o2}"
                A(f"  s_cbranch_vccnz L_ss_{tag}{k}\n{st}{' ' + o['xst'] if o['xst'] else ''}\nL_sr_{tag}{k}:")
                slow_blocks.append(f"L_ss_{tag}{k}:\n{st} sc1\n  s_branch L_sr_{tag}{k}")
                if a == 0 and mt == 0: A(f"  v_add_u32 v15, 0x1000, v{vST}")
                k += 1
    A(f"""  s_getreg_b32 s43, hwreg(HW_REG_XCC_ID, 0, 3)
  s_lshl_b32 s43, s43, 2
  s_lshl_b32 s43, 8, s43
  s_mov_b32 s42, 0
  s_waitcnt vmcnt(0)
L_gs:
  v_readfirstlane_b32 s46, v14
  v_readfirstlane_b32 s47, v15
  s_nop 3
  s_cmp_ge_u32 s46, 8
  s_cbranch_scc1 L_gs_done
  s_add_u32 s42, s42, 1
  s_cmp_ge_u32 s42, 0x100000
  s_cbranch_scc1 L_gs_done
  s_sleep 2
  s_lshl_b32 s46, s16, 3
  v_mov_b32 v13, s46
  global_load_dwordx2 v[14:15], v13, s[12:13] sc1
  s_waitcnt vmcnt(0)
  s_branch L_gs
L_gs_done:
  s_cmp_lg_u32 s47, s43
  s_cselect_b32 s50, -1, {-1 if o["force_slow"] else 0}
  s_mov_b32 s51, s50
  s_mov_b64 vcc, s[50:51]""")
    epi(True, "a")
    A("  s_branch L_epi_tail\nL_epi1:\n  s_mov_b64 vcc, s[50:51]")
    epi(False, "b")
    A(f"""L_epi_tail:
  s_lshl_b32 s42, s28, 13
  s_add_u32 s42, s42, s35
  s_add_u32 s42, s42, {XOFF}
  v_lshl_add_u32 v{vXA}, v0, 4, s42
  v_add_u32 v{vXA+1}, 0x400, v{vXA}
  s_waitcnt vmcnt(8)""")
    unpack_bias()
    A("  s_add_u32 s34, s34, 1")
    A(f"""  s_mov_b32 s48, {BST}
  s_cmp_eq_u32 s34, 2
  s_cbranch_scc0 L_noev
  s_lshr_b32 s42, s2, 3
  s_or_b32 s42, s42, s3
  s_cmp_eq_u32 s42, 0
  s_cselect_b32 s48, {o["wbstage"] if o["wbl2"] else 99}, 99
L_noev:""")
    A("  s_waitcnt lgkmcnt(0)\n  s_barrier                          ; B'")
    A(vstamp(vSTAMP, "s34", 11))
    A("  s_branch L_layer")
    A(f"""L_reg:
  s_cmp_lg_u32 s3, 0
  s_cbranch_scc1 L_noflag
  s_getreg_b32 s42, hwreg(HW_REG_XCC_ID, 0, 3)
  s_lshl_b32 s42, s42, 2
  s_lshl_b32 s42, 1, s42
  s_lshl_b32 s43, s16, 3
  v_mov_b32 v13, s43
  v_mov_b32 v14, 1
  v_mov_b32 v15, s42
  s_mov_b64 exec, 1
  s_waitcnt vmcnt(0)
  global_atomic_add_x2 v13, v[14:15], s[12:13]
  s_mov_b64 exec, -1
  s_branch L_noflag
L_flag_coh:
  global_store_dword v13, v14, s[14:15] sc1
  s_branch L_flag_done
L_ev_f:
  s_call_b64 s[52:53], L_event
  s_branch L_evr_f
L_ev_m:
  s_call_b64 s[52:53], L_event
  s_branch L_evr_m
L_ev_l:
  s_call_b64 s[52:53], L_event
  s_branch L_evr_l
L_event:
  s_cmp_eq_u32 s41, {BST}
  s_cbranch_scc0 L_ev_nb
  s_cmp_eq_u32 s34, 2
  s_cbranch_scc1 L_ev_nb
  v_add_u32 v{vBO}, 0x800, v{vBO}
  global_load_dwordx2 v[{BIAS+2}:{BIAS+3}], v{vBO}, s[8:9] offset:0
  global_load_dwordx2 v[{BIAS+6}:{BIAS+7}], v{vBO}, s[8:9] offset:32
  global_load_dwordx2 v[{BIAS+10}:{BIAS+11}], v{vBO}, s[8:9] offset:64
  global_load_dwordx2 v[{BIAS+14}:{BIAS+15}], v{vBO}, s[8:9] offset:96
L_ev_nb:
  s_cmp_eq_u32 s34, 0
  s_cbranch_scc0 L_ev_wb
  s_cmp_eq_u32 s41, s49
  s_cbranch_scc0 L_ev_stat
  s_sub_u32 s42, s35, s37
  s_cmp_eq_u32 s35, 0
  s_cselect_b32 s42, {RING-SLOT}, s42
  v_add_u32 v2, s42, v{vLW}""")
    for t in range(4):
        if t: A(f"  v_xor_b32 v13, {32*t}, v2")
        ar = 2 if t == 0 else 13
        for mt in range(4):
            a, tt = t // 2, t % 2
            d = XL + (mt*2+a)*4 + tt*2
            A(f"  ds_read_b64 v[{d}:{d+1}], v{ar} offset:{mt*2048}")
    A(f"""  s_waitcnt lgkmcnt(0)
L_ev_stat:
  s_cmp_eq_u32 s41, 13
  s_cbranch_scc0 L_ev_next
  s_lshl_b32 s42, s16, 3
  v_mov_b32 v13, s42
  global_load_dwordx2 v[14:15], v13, s[12:13] sc1
L_ev_next:
  s_mov_b32 s48, 99
  s_cmp_gt_u32 s49, s41
  s_cselect_b32 s48, s49, s48
  s_cmp_lt_u32 s41, 13
  s_cselect_b32 s42, 13, 99
  s_min_u32 s48, s48, s42
  s_cmp_lt_u32 s41, {BST}
  s_cselect_b32 s42, {BST}, 99
  s_min_u32 s48, s48, s42
  s_setpc_b64 s[52:53]
L_ev_wb:
  s_cmp_eq_u32 s34, 2
  s_cbranch_scc0 L_ev_x
  buffer_wbl2 sc1
L_ev_x:
  s_mov_b32 s48, 99
  s_setpc_b64 s[52:53]""")
    for b in slow_blocks: A(b)
    STG = 3*SLOT; ROWB = 272
    A(f"""L_final:
  v_and_b32 v13, 15, v0             ; m
  v_lshrrev_b32 v14, 4, v0          ; q
  v_mul_u32_u24 v13, {ROWB}, v13
  v_lshl_add_u32 v13, v14, 3, v13   ; + q*8
  s_mul_i32 s42, s28, {64*ROWB}
  s_lshl_b32 s43, s27, 7
  s_add_u32 s42, s42, s43
  s_add_u32 s42, s42, {STG}
  v_add_u32 v{vLW}, s42, v13""")
    for a in range(2):
        for mt in range(4):
            epi_math(mt, a, False)
            f = XL + (mt*2+a)*4
            for tt in range(2):
                t = 2*a + tt
                A(f"  ds_write_b64 v{vLW}, v[{f+2*tt}:{f+2*tt+1}] offset:{mt*16*ROWB + t*32}")
    A("  s_waitcnt lgkmcnt(0)\n  s_barrier                          ; B_fin")
    A(f"""L_out:                               ; all 8 waves: copy the staged tile to out
  v_lshrrev_b32 v13, 4, v0
  v_and_b32 v14, 15, v0
  s_lshl_b32 s42, s3, 4
  v_add_u32 v13, s42, v13
  v_mul_u32_u24 v15, {ROWB}, v13
  v_lshl_add_u32 v15, v14, 4, v15
  v_add_u32 v15, {STG}, v15
  s_lshl_b32 s42, s16, 7
  v_add_u32 v13, s42, v13
  v_lshlrev_b32 v13, 11, v13
  v_lshl_add_u32 v13, v14, 4, v13
  s_lshl_b32 s42, s18, 8
  v_add_u32 v13, s42, v13
  s_mov_b32 s24, s10
  s_mov_b32 s25, s11
  s_mov_b32 s26, 0x800000
  s_mov_b32 s27, 0x20000""")
    for i in range(4): A(f"  ds_read_b128 v[{32+4*i}:{35+4*i}], v15 offset:{i*4*ROWB}")
    for i in range(4):
        A(f"  s_waitcnt lgkmcnt({3-i})")
        A(f"  buffer_store_dwordx4 v[{32+4*i}:{35+4*i}], v13, s[24:27], 0 offen sc1")
        if i < 3: A("  v_add_u32 v13, 0x2000, v13")
    if STAMP:
        A("  s_cmp_lg_u32 s3, 0\n  s_cbranch_scc1 L_end\n  s_waitcnt vmcnt(0)")
        A(vstamp(vSTAMP, None, 3))
        A(f"""  v_mov_b32 v14, s66
  v_cmp_eq_u32 vcc, 0, v0
  s_nop 1
  v_cndmask_b32 v3, v3, v14, vcc
  s_lshl_b32 s42, s2, 8
  s_add_u32 s42, s42, {WS_STAMP}
  v_lshl_add_u32 v13, v0, 2, s42
  global_store_dword v13, v3, s[14:15]
  s_waitcnt vmcnt(0)""")
    A("L_end:\n  s_endpgm")
    A(kernel_desc(name, 256, 96, 256))
    return A.text()

if __name__ == "__main__":
    out = sys.argv[1]
    kw = {}
    for a in sys.argv[2:]:
        k, v = a.split("="); kw[k] = int(v) if v.lstrip("-").isdigit() else v
    open(out, "w").write(gen(**kw))
```
